```python
import torch

def _softmax(x, axis=-1):
    return torch.softmax(x, dim=axis)
def _gelu(x):
    return torch.nn.functional.gelu(x, approximate="tanh")
def _silu(x):
    return torch.nn.functional.silu(x)
def _sigmoid(x):
    return torch.sigmoid(x)
def _layernorm(x, axis=-1, eps=1e-5):
    m = x.mean(dim=axis, keepdim=True)
    v = x.var(dim=axis, keepdim=True, unbiased=False)
    return (x - m) / torch.sqrt(v + eps)
def _scatter_add(tgt, idx, src, axis=0):
    return tgt.clone().index_add_(axis, idx, src)
def _segment_sum(src, seg, n):
    out = torch.zeros((n,) + src.shape[1:], dtype=src.dtype)
    return out.index_add_(0, seg, src)
def _pad(x, pw):
    flat = tuple(v for pair in reversed(pw) for v in pair)
    return torch.nn.functional.pad(x, flat)

kernel_name = 'interleave_layers__ssm_conv_h3__dense_activation_silu__prompt'

def setup_inputs():

    _w = (lambda a: (lambda t: t.to(torch.bfloat16) if t.is_floating_point() else t)(torch.as_tensor(a)))
    def _A_setup():
        B, S, D = 1, 2048, 640
        ks = 4
        return {
            "q": _w((lambda *s: torch.randn(*s, dtype=torch.bfloat16) * 0.05)(B, S, D)),
            "k": _w((lambda *s: torch.randn(*s, dtype=torch.bfloat16) * 0.2)(B, S, D)),
            "v": _w((lambda *s: torch.randn(*s, dtype=torch.bfloat16) * 0.2)(B, S, D)),
            "shift_k": _w((lambda *s: torch.randn(*s, dtype=torch.bfloat16) * 0.2)(D, ks) * 0.5),
            "ssm_k": _w((lambda *s: torch.randn(*s, dtype=torch.bfloat16) * 0.8)(D, S) * (1.0 / S ** 0.5)),
            "ssm_D": _w((lambda *s: torch.randn(*s, dtype=torch.bfloat16) * 0.2)(D)),
        }
    _A_in = _A_setup()

    def _B_setup():
        B, S, D, F = 1, 2048, 640, 1728
        return {
            "x": _w((lambda *s: torch.randn(*s, dtype=torch.bfloat16) * 0.05)(B, S, D)),
            "w1": _w((lambda *s: torch.randn(*s, dtype=torch.bfloat16) * 0.8)(D, F) * (D ** -0.5)),
            "w2": _w((lambda *s: torch.randn(*s, dtype=torch.bfloat16) * 0.2)(F, D) * (F ** -0.5)),
        }
    _B_in = _B_setup()

    return {
        "A_q": _A_in["q"],
        "A_k": _A_in["k"],
        "A_v": _A_in["v"],
        "A_shift_k": _A_in["shift_k"],
        "A_ssm_k": _A_in["ssm_k"],
        "A_ssm_D": _A_in["ssm_D"],
        "B_x": _B_in["x"],
        "B_w1": _B_in["w1"],
        "B_w2": _B_in["w2"],
    }

def reference(A_q, A_k, A_v, A_shift_k, A_ssm_k, A_ssm_D, B_x, B_w1, B_w2):
    def _A_ref(q, k, v, shift_k, ssm_k, ssm_D):
        B, S, D = q.shape
        ks = shift_k.shape[-1]
        k_pad = _pad(k, ((0, 0), (ks - 1, 0), (0, 0)))
        k_shift = torch.zeros_like(k)
        for t in range(ks):
            k_shift = k_shift + k_pad[:, t:t + S, :] * shift_k[:, ks - 1 - t][None, None, :]
        kv = k_shift * v
        L = 2 * S
        kv_pad = _pad(kv, ((0, 0), (0, S), (0, 0)))
        kf_pad = _pad(ssm_k, ((0, 0), (0, S)))
        kv_f = (lambda x, axes=(-2,-1): torch.fft.rfft2(x.float(), dim=axes))(kv_pad[:, None, :, :], axes=(1, 2))
        kf_f = (lambda x, axes=(-2,-1): torch.fft.rfft2(x.float(), dim=axes))(kf_pad[:, None, :], axes=(1, 2))
        kf_f = (lambda x, *d: x.permute(*d))(kf_f, 1, 2, 0)
        y_f = kv_f * kf_f[None, :, :, :]
        y = (lambda x, s, axes=(-2,-1): torch.fft.irfft2(x, s=s, dim=axes).to(torch.bfloat16))(y_f, (1, L), axes=(1, 2))[:, 0, :S, :]
        y = y + kv * ssm_D[None, None, :]
        return q * y

    def _B_ref(x, w1, w2):
        h = torch.einsum("bsd,df->bsf", x, w1)
        h = _silu(h)
        out = torch.einsum("bsf,fd->bsd", h, w2)
        return out

    x = A_q
    x = x + _A_ref(_layernorm(x, axis=-1), A_k, A_v, A_shift_k, A_ssm_k, A_ssm_D)
    x = x + _B_ref(_layernorm(x, axis=-1), B_w1, B_w2)
    x = x + _A_ref(_layernorm(x, axis=-1), A_k, A_v, A_shift_k, A_ssm_k, A_ssm_D)
    x = x + _B_ref(_layernorm(x, axis=-1), B_w1, B_w2)
    return x
```

```python
import re

TRANS = ('v_exp_f32', 'v_log_f32', 'v_rcp_f32', 'v_rsq_f32', 'v_sqrt_f32', 'v_sin_f32', 'v_cos_f32')

def regs_of(tok):
    tok = tok.strip()
    tok = tok.lstrip('-')
    m = re.fullmatch(r'abs\((.*)\)', tok)
    if m: tok = m.group(1)
    m = re.fullmatch(r'\|(.*)\|', tok)
    if m: tok = m.group(1)
    m = re.fullmatch(r'([vsa])(\d+)', tok)
    if m: return {(m.group(1), int(m.group(2)))}
    m = re.fullmatch(r'([vsa])\[(\d+):(\d+)\]', tok)
    if m: return {(m.group(1), i) for i in range(int(m.group(2)), int(m.group(3)) + 1)}
    if tok == 'vcc': return {('s', 106), ('s', 107)}
    if tok == 'vcc_lo': return {('s', 106)}
    if tok == 'vcc_hi': return {('s', 107)}
    if tok == 'exec': return {('s', 126), ('s', 127)}
    if tok == 'm0': return {('s', 124)}
    return set()

def split_ops(s):
    out, depth, cur = [], 0, ''
    for ch in s:
        if ch in '[(': depth += 1
        if ch in '])': depth -= 1
        if ch == ',' and depth == 0:
            out.append(cur.strip()); cur = ''
        else:
            cur += ch
    if cur.strip(): out.append(cur.strip())
    return out

class Ins:
    __slots__ = ('text', 'op', 'kind', 'dst', 'src', 'srcC', 'srcAB', 'passes', 'ws', 'dpp', 'wide_store', 'data')
    def __init__(self, text):
        self.text = text
        t = text.split(';')[0].strip()
        self.op = t.split()[0] if t else ''
        self.kind = 'other'; self.dst = set(); self.src = set(); self.srcC = set(); self.srcAB = set()
        self.passes = 0; self.ws = 1; self.dpp = False; self.wide_store = False; self.data = set()
        if not t or t.endswith(':') or t.startswith('.'):
            self.kind = 'label' if t.endswith(':') else 'directive'; self.ws = 0; return
        rest = t[len(self.op):].strip()
        ops = split_ops(rest)
        toks = []
        mods = []
        for o in ops:
            parts = o.split()
            toks.append(parts[0] if parts else '')
            mods += parts[1:]
        op = self.op
        if op == 's_nop':
            self.kind = 'nop'; self.ws = int(toks[0], 0) + 1; return
        if op.startswith('v_mfma'):
            self.kind = 'mfma'
            self.dst = regs_of(toks[0]); self.srcAB = regs_of(toks[1]) | regs_of(toks[2]); self.srcC = regs_of(toks[3])
            self.src = self.srcAB | self.srcC
            self.passes = 8 if '32x32' in op else 4
            return
        if op.startswith('v_'):
            self.kind = 'valu'
            if any(m.startswith(('row_', 'quad_perm', 'wave_', 'row_bcast')) for m in mods): self.dpp = True
            if op.startswith('v_cmp'):
                self.dst = regs_of(toks[0]);
                for x in toks[1:]: self.src |= regs_of(x)
            elif op.startswith(('v_permlane16_swap', 'v_permlane32_swap')):
                self.dst = regs_of(toks[0]) | regs_of(toks[1]); self.src = set(self.dst)
            elif op in ('v_add_co_u32', 'v_addc_co_u32', 'v_sub_co_u32', 'v_add_co_u32_e32', 'v_addc_co_u32_e32'):
                self.dst = regs_of(toks[0]) | regs_of(toks[1])
                for x in toks[2:]: self.src |= regs_of(x)
            else:
                self.dst = regs_of(toks[0])
                for x in toks[1:]: self.src |= regs_of(x)
                if op.startswith(('v_fmac', 'v_pk_fmac')): self.src |= self.dst
                if op.startswith('v_cndmask') and len(toks) == 3: self.src |= regs_of('vcc')
            return
        if op.startswith('s_'):
            self.kind = 'salu'
            if op.startswith(('s_cmp', 's_waitcnt', 's_barrier', 's_branch', 's_cbranch', 's_endpgm', 's_sleep', 's_setprio')):
                for x in toks: self.src |= regs_of(x)
                if op.startswith(('s_branch', 's_cbranch')): self.kind = 'branch'
            elif op.startswith(('s_load', 's_buffer_load', 's_memtime', 's_memrealtime')):
                self.kind = 'smem'; self.dst = regs_of(toks[0])
                for x in toks[1:]: self.src |= regs_of(x)
            else:
                self.dst = regs_of(toks[0])
                for x in toks[1:]: self.src |= regs_of(x)
            return
        if op.startswith(('buffer_', 'global_', 'flat_')):
            self.kind = 'vmem'
            is_lds = ('lds' in mods) or ('_lds_' in op)
            if 'load' in op and not is_lds:
                self.dst = regs_of(toks[0])
                for x in toks[1:]: self.src |= regs_of(x)
            elif 'load' in op and is_lds:
                for x in toks: self.src |= regs_of(x)
                self.src |= regs_of('m0'); self.kind = 'vmem_lds'
            elif op.startswith('buffer_store') or op.startswith('buffer_atomic'):
                self.data = regs_of(toks[0])
                for x in toks: self.src |= regs_of(x)
                if 'x4' in op or 'x3' in op: self.wide_store = True
                if 'atomic' in op and 'sc0' in mods: self.dst = regs_of(toks[0])
            else:
                self.data = regs_of(toks[1]) if len(toks) > 1 else set()
                for x in toks: self.src |= regs_of(x)
                if 'x4' in op or 'x3' in op: self.wide_store = True
            return
        if op.startswith('ds_'):
            self.kind = 'ds'
            if op.startswith(('ds_read', 'ds_bpermute', 'ds_permute', 'ds_swizzle')):
                self.dst = regs_of(toks[0])
                for x in toks[1:]: self.src |= regs_of(x)
            else:
                for x in toks: self.src |= regs_of(x)
            return
        raise ValueError('unknown instruction: ' + text)

def need(prod, cons):
    n = 0
    pv = {r for r in prod.dst if r[0] in 'va'}
    ps = {r for r in prod.dst if r[0] == 's'}
    if prod.kind == 'valu':
        if cons.kind == 'mfma' and (pv & cons.src): n = max(n, 2)
        if cons.kind == 'valu':
            if prod.op.split('_e')[0] in TRANS and (pv & (cons.src)): n = max(n, 1)
            if cons.op.startswith(('v_readlane', 'v_readfirstlane')) and (pv & cons.src): n = max(n, 1)
            if cons.dpp and (pv & cons.src): n = max(n, 2)
            if cons.op.startswith('v_permlane') and (pv & cons.src): n = max(n, 2)
            if ps & cons.src: n = max(n, 4 if cons.op.startswith(('v_readlane', 'v_writelane')) else 2)
        if cons.kind in ('vmem', 'vmem_lds') and (ps & cons.src): n = max(n, 5)
        if cons.kind in ('salu', 'branch', 'smem') and (ps & cons.src): n = max(n, 1)
    if prod.kind == 'mfma':
        big = 12 if prod.passes == 8 else 8
        if cons.kind == 'mfma':
            if pv & cons.srcAB: n = max(n, big)
            if pv & cons.srcC:
                if cons.srcC == pv and cons.passes == prod.passes: pass
                else: n = max(n, 10 if prod.passes == 8 else 6)
            if (pv & cons.dst) and not (pv & cons.srcC): n = max(n, 10 if prod.passes == 8 else 6)
        elif cons.kind in ('valu', 'vmem', 'vmem_lds', 'ds'):
            if pv & (cons.src | cons.dst): n = max(n, big)
        if cons.kind == 'valu' and (prod.srcC & cons.dst): n = max(n, 7 if prod.passes == 8 else 3)
    if prod.kind == 'vmem' and prod.wide_store:
        if cons.dst & prod.data: n = max(n, 2 if cons.kind == 'valu' else 1)
    if prod.kind == 'salu' and ('s', 124) in prod.dst and cons.kind == 'vmem_lds': n = max(n, 1)
    return n

class K:
    def __init__(self):
        self.lines = []
    def __call__(self, text):
        for ln in text.strip('\n').split('\n'):
            ln = ln.strip()
            if ln: self.lines.append(ln)
    def fence(self):
        self.lines.append('s_nop 7'); self.lines.append('s_nop 7')
    def render(self):
        out = []
        hist = []
        pos = 0
        for ln in self.lines:
            ins = Ins(ln)
            if ins.kind in ('label',):
                out.append(ln); continue
            if ins.kind == 'directive' or ins.op == '':
                out.append(ln); continue
            req = 0
            for (p, ppos) in hist[-24:]:
                nn = need(p, ins)
                if nn:
                    have = pos - ppos
                    if have < nn: req = max(req, nn - have)
            while req > 0:
                c = min(req, 8)
                out.append('    s_nop %d' % (c - 1)); pos += c; req -= c
            out.append('    ' + ln)
            pos += ins.ws
            hist.append((ins, pos))
        return '\n'.join(out) + '\n'
```

```python
from asmlib import K
from gen import *

CSTR = 4160
KC_BYTES = 8 * CSTR
XR_OFF = KC_BYTES
XR_ROWS = 95
C_LDS = XR_OFF + XR_ROWS * 80

def gen_c():
    k = K()
    k('s_cmp_ge_u32 s2, 640')
    k('s_cbranch_scc1 C_done')
    k('s_load_dwordx4 s[4:7], s[0:1], 32')
    k('s_load_dwordx2 s[16:17], s[0:1], 88')
    k('s_waitcnt lgkmcnt(0)')
    k('s_lshr_b32 s40, s2, 1')
    k('s_lshl_b32 s40, s40, 2')
    k('s_add_u32 s6, s6, s40')
    k('s_addc_u32 s7, s7, 0')
    k('s_load_dword s41, s[6:7], 0')
    k('s_lshl_b32 s40, s2, 12')
    k('s_add_u32 s20, s4, s40')
    k('s_addc_u32 s21, s5, 0')
    k('s_and_b32 s21, s21, 0xffff')
    k('s_mov_b32 s22, 4096')
    k('s_mov_b32 s23, 0x00020000')
    k('s_add_u32 s24, s16, s40')
    k('s_addc_u32 s25, s17, 0')
    k('s_and_b32 s25, s25, 0xffff')
    k('s_mov_b32 s26, 4096')
    k('s_mov_b32 s27, 0x00020000')
    srd(k, 28, 16, 17, YB, SZ_ACT)
    k('v_lshlrev_b32 v1, 4, v0')
    k('v_subrev_u32 v2, 64, v1')
    k('v_add_u32 v3, 16, v2')
    for it in range(5):
        base = 32 + 16 * it
        if it == 0:
            k(f'buffer_load_dwordx4 v[{base}:{base+3}], v2, s[20:23], 0 offen')
            k(f'buffer_load_dwordx4 v[{base+4}:{base+7}], v3, s[20:23], 0 offen')
        else:
            k(f'buffer_load_dwordx4 v[{base}:{base+3}], v1, s[20:23], 0 offen offset:{1024*it - 64}')
            k(f'buffer_load_dwordx4 v[{base+4}:{base+7}], v1, s[20:23], 0 offen offset:{1024*it - 48}')
    for j in range(4):
        k(f'buffer_load_dwordx4 v[{112+4*j}:{115+4*j}], v1, s[24:27], 0 offen offset:{1024*j}')
    k('v_lshrrev_b32 v5, 2, v0')
    k('v_mul_u32_u24 v5, 80, v5')
    k('v_and_b32 v6, 3, v0')
    k('v_lshl_add_u32 v5, v6, 4, v5')
    k('v_mov_b32 v8, 0')
    k('v_mov_b32 v9, 0')
    k('v_mov_b32 v10, 0')
    k('v_mov_b32 v11, 0')
    k(f'ds_write_b128 v5, v[8:11] offset:{XR_OFF + 64*80}')
    k('v_cmp_gt_u32 vcc, 60, v0')
    k('s_and_saveexec_b64 s[42:43], vcc')
    k(f'ds_write_b128 v5, v[8:11] offset:{XR_OFF + 80*80}')
    k('s_mov_b64 exec, s[42:43]')
    for it in range(5):
        base = 32 + 16 * it
        k(f's_waitcnt vmcnt({4 + 2*(4-it)})')
        w = lambda j: base + j
        for j in range(7):
            k(f'v_alignbit_b32 v{12+j}, v{w(j+1)}, v{w(j)}, 16')
        for j in range(4):
            k(f'v_mov_b32 v{20+j}, v{13+j}')
            k(f'v_mov_b32 v{24+j}, v{15+j}')
            k(f'v_mov_b32 v{base+8+j}, v{base+1+j}')
            k(f'v_mov_b32 v{base+12+j}, v{base+3+j}')
        srcs = {0: 12, 1: base + 8, 2: 20, 3: base + 2, 4: 14, 5: base + 12, 6: 24, 7: base + 4}
        if it == 4:
            k('v_cmp_gt_u32 vcc, 3, v0')
            k('s_and_saveexec_b64 s[42:43], vcc')
        for r in range(8):
            k(f'ds_write_b128 v1, v[{srcs[r]}:{srcs[r]+3}] offset:{r*CSTR + 1024*it}')
        if it == 4:
            k('s_mov_b64 exec, s[42:43]')
    k('s_waitcnt vmcnt(0)')
    for j in range(4):
        k(f'ds_write_b128 v5, v[{112+4*j}:{115+4*j}] offset:{XR_OFF + 1280*j}')
    k('v_and_b32 v2, 7, v0')
    k('v_mul_u32_u24 v2, 4160, v2')
    k('v_and_b32 v3, 24, v0')
    k('v_lshl_add_u32 v2, v3, 1, v2')
    k('v_lshrrev_b32 v3, 5, v0')
    k('v_lshl_add_u32 v2, v3, 4, v2')
    k('v_and_b32 v4, 31, v0')
    k('v_sub_u32 v4, 31, v4')
    k('v_mul_u32_u24 v4, 80, v4')
    k('v_lshl_add_u32 v4, v3, 4, v4')
    for i in range(32):
        k(f'v_mov_b32 v{128+i}, 0')
    k('s_waitcnt lgkmcnt(0)')
    def boff(q): return XR_OFF + (q >> 1) * 80 + 32 * (q & 1)
    def issue(t, p):
        b = 32 + 16 * p
        k(f'ds_read_b128 v[{b}:{b+3}], v2 offset:{32*t}')
        k(f'ds_read_b128 v[{b+12}:{b+15}], v4 offset:{boff(64+t)}')
        k(f'ds_read_b128 v[{b+8}:{b+11}], v4 offset:{boff(t)}')
        k(f'ds_read_b128 v[{b+4}:{b+7}], v2 offset:{32*(64+t)}')
    NS = 3
    for t in range(NS - 1): issue(t, t)
    for t in range(64):
        p = t % NS
        if t + NS - 1 < 64: issue(t + NS - 1, (t + NS - 1) % NS)
        rem = min(NS - 1, 63 - t)
        k(f's_waitcnt lgkmcnt({4*rem})')
        b = 32 + 16 * p
        k(f'v_mfma_f32_32x32x16_bf16 v[128:143], v[{b}:{b+3}], v[{b+12}:{b+15}], v[128:143]')
        k(f'v_mfma_f32_32x32x16_bf16 v[144:159], v[{b}:{b+3}], v[{b+8}:{b+11}], v[144:159]')
        k(f'v_mfma_f32_32x32x16_bf16 v[144:159], v[{b+4}:{b+7}], v[{b+12}:{b+15}], v[144:159]')
    k('s_and_b32 s40, s2, 1')
    k('s_lshl_b32 s40, s40, 4')
    k('s_lshr_b32 s41, s41, s40')
    k('s_lshl_b32 s41, s41, 16')
    k('v_and_b32 v5, 31, v0')
    k('v_lshrrev_b32 v6, 5, v0')
    k('v_sub_u32 v7, 63, v5')
    k('v_mul_u32_u24 v7, 80, v7')
    k('v_lshlrev_b32 v8, 3, v6')
    k('v_sub_u32 v7, v7, v8')
    for i in range(2):
        for rg in range(4):
            k(f'ds_read_b64 v[{32+2*(4*i+rg)}:{33+2*(4*i+rg)}], v7 offset:{XR_OFF + 56 - 16*rg - 2560*i + 0}')
    k('s_mov_b32 s40, 40960')
    k('v_mul_lo_u32 v9, v5, s40')
    k('s_lshl_b32 s42, s2, 4')
    k('v_add_u32 v9, s42, v9')
    k('v_add_u32 v9, v9, v8')
    k('s_waitcnt lgkmcnt(0)')
    for i in range(2):
        for rg in range(4):
            kvr = 32 + 2 * (4 * i + rg)
            acc = 128 + 16 * i + 4 * rg
            k(f'v_and_b32 v50, 0xffff0000, v{kvr+1}')
            k(f'v_lshlrev_b32 v51, 16, v{kvr+1}')
            k(f'v_and_b32 v52, 0xffff0000, v{kvr}')
            k(f'v_lshlrev_b32 v53, 16, v{kvr}')
            for e in range(4): k(f'v_mul_f32 v{50+e}, s41, v{50+e}')
            k('v_cvt_pk_bf16_f32 v54, v50, v51')
            k('v_cvt_pk_bf16_f32 v55, v52, v53')
            k(f'v_cvt_pk_bf16_f32 v56, v{acc}, v{acc+1}')
            k(f'v_cvt_pk_bf16_f32 v57, v{acc+2}, v{acc+3}')
            k('v_lshlrev_b32 v50, 16, v54'); k('v_and_b32 v51, 0xffff0000, v54')
            k('v_lshlrev_b32 v52, 16, v55'); k('v_and_b32 v53, 0xffff0000, v55')
            k('v_lshlrev_b32 v58, 16, v56'); k('v_and_b32 v59, 0xffff0000, v56')
            k('v_lshlrev_b32 v60, 16, v57'); k('v_and_b32 v61, 0xffff0000, v57')
            for e in range(4): k(f'v_add_f32 v{50+e}, v{50+e}, v{58+e}')
            o = 64 + 2 * (4 * i + rg)
            k(f'v_cvt_pk_bf16_f32 v{o}, v50, v51')
            k(f'v_cvt_pk_bf16_f32 v{o+1}, v52, v53')
            k(f'v_add_u32 v{80+4*i+rg}, {i*32*40960 + rg*10240}, v9')
            k(f'buffer_store_dwordx2 v[{o}:{o+1}], v{80+4*i+rg}, s[28:31], 0 offen')
    k('C_done:')
    k('s_endpgm')
    return header('c_kernel') + k.render(), desc('c_kernel', 160)
```

```python
from asmlib import K
from gen import *

BT_BYTES = 143360
YS = BT_BYTES
CTRL = YS + 10880
G1_LDS = CTRL + 128
G2_LDS = 81920
SPIN_MAX = 400

def allreduce32(k, v, t1, t2):
    for sh in (1, 2, 4, 8):
        k(f'v_add_f32_dpp v{t1}, v{v}, v{v} row_ror:{sh} row_mask:0xf bank_mask:0xf')
        k(f'v_mov_b32 v{v}, v{t1}')
    k(f'v_mov_b32 v{t2}, v{v}')
    k(f'v_permlane16_swap_b32 v{t1}, v{t2}')
    k(f'v_add_f32 v{v}, v{t1}, v{t2}')

def bf16r(k, dst, src, tmp):
    k(f'v_cvt_pk_bf16_f32 v{tmp}, v{src}, v{src}')
    k(f'v_lshlrev_b32 v{dst}, 16, v{tmp}')

def ln_stats(k, X, mb, inv, t1, t2, t3):
    k(f'v_add_f32 v{t3}, v{X[0]}, v{X[1]}')
    for i in range(2, 20): k(f'v_add_f32 v{t3}, v{t3}, v{X[i]}')
    allreduce32(k, t3, t1, t2)
    k(f'v_mul_f32 v{t3}, 0x3acccccd, v{t3}')
    k(f'v_sub_f32 v{t1}, v{X[0]}, v{t3}')
    k(f'v_mul_f32 v{inv}, v{t1}, v{t1}')
    for i in range(1, 20):
        k(f'v_sub_f32 v{t1}, v{X[i]}, v{t3}')
        k(f'v_fmac_f32 v{inv}, v{t1}, v{t1}')
    allreduce32(k, inv, t1, t2)
    k(f'v_mul_f32 v{inv}, 0x3acccccd, v{inv}')
    bf16r(k, mb, t3, t1)
    bf16r(k, inv, inv, t1)
    k(f'v_add_f32 v{inv}, 0x3727c5ac, v{inv}')
    bf16r(k, inv, inv, t1)
    k(f'v_sqrt_f32 v{inv}, v{inv}')
    bf16r(k, inv, inv, t1)
    k(f'v_rcp_f32 v{inv}, v{inv}')

def ln_phase(k, first):
    k('s_mul_i32 s53, s52, 10240')
    for j in range(5):
        k(f'buffer_load_dwordx2 v[{64+2*j}:{65+2*j}], v1, s[20:23], s53 offen offset:{256*j}')
    k('buffer_load_dwordx4 v[76:79], v2, s[24:27], s53 offen')
    k('buffer_load_dwordx4 v[80:83], v3, s[24:27], s53 offen')
    k('buffer_load_dwordx4 v[84:87], v4, s[24:27], s53 offen')
    if first:
        k('s_mul_i32 s54, s50, 35840')
        k('s_mul_i32 s55, s49, 143360')
        k('s_add_u32 s55, s55, s54')
        for i in range(35):
            if i % 4 == 0:
                k('s_mov_b32 m0, s54')
            k(f'buffer_load_dwordx4 v2w, s[36:39], s55 offen offset:{1024*(i%4)} lds'.replace('v2w', 'v9'))
            if i % 4 == 3:
                k('s_add_u32 s54, s54, 4096')
                k('s_add_u32 s55, s55, 4096')
        k('s_waitcnt vmcnt(35)')
    else:
        k('s_waitcnt vmcnt(0)')
    for i in range(4):
        k(f'ds_write_b32 v6, v{76+i} offset:{4*i}')
        k(f'ds_write_b32 v6, v{80+i} offset:{4352+4*i}')
    k('s_cmp_ge_u32 s50, 2')
    lbl = 'G1_skipw_' + ('f' if first else 'l') + k.tag
    k(f's_cbranch_scc1 {lbl}')
    for i in range(4):
        k(f'ds_write_b32 v6, v{84+i} offset:{8704+4*i}')
    k(f'{lbl}:')
    k('s_waitcnt lgkmcnt(0)')
    k('s_barrier')
    for j in range(5):
        for i in range(4):
            k(f'ds_read_u16 v{90+4*j+i}, v7 offset:{2176*j+16*i}')
    X = [110 + i for i in range(20)]
    for j in range(10):
        k(f'v_lshlrev_b32 v{110+2*j}, 16, v{64+j}')
        k(f'v_and_b32 v{111+2*j}, 0xffff0000, v{64+j}')
    ln_stats(k, X, 130, 131, 132, 133, 134)
    k('s_waitcnt lgkmcnt(0)')
    for j in range(10):
        a, b = X[2*j], X[2*j+1]
        k(f'v_sub_f32 v132, v{a}, v130')
        k(f'v_sub_f32 v133, v{b}, v130')
        k('v_cvt_pk_bf16_f32 v134, v132, v133')
        k('v_lshlrev_b32 v132, 16, v134'); k('v_and_b32 v133, 0xffff0000, v134')
        k('v_mul_f32 v132, v132, v131'); k('v_mul_f32 v133, v133, v131')
        k('v_cvt_pk_bf16_f32 v134, v132, v133')
        k('v_lshlrev_b32 v132, 16, v134'); k('v_and_b32 v133, 0xffff0000, v134')
        k(f'v_lshlrev_b32 v135, 16, v{90+2*j}'); k(f'v_lshlrev_b32 v136, 16, v{91+2*j}')
        k('v_mul_f32 v132, v132, v135'); k('v_mul_f32 v133, v133, v136')
        k('v_cvt_pk_bf16_f32 v134, v132, v133')
        k('v_lshlrev_b32 v132, 16, v134'); k('v_and_b32 v133, 0xffff0000, v134')
        k(f'v_add_f32 v132, v{a}, v132'); k(f'v_add_f32 v133, v{b}, v133')
        k(f'v_cvt_pk_bf16_f32 v{64+j}, v132, v133')
        k(f'v_lshlrev_b32 v{a}, 16, v{64+j}'); k(f'v_and_b32 v{b}, 0xffff0000, v{64+j}')
    for j in range(5):
        k(f'buffer_store_dwordx2 v[{64+2*j}:{65+2*j}], v1, s[28:31], s53 offen offset:{256*j}')
    ln_stats(k, X, 130, 131, 132, 133, 134)
    k('s_lshr_b32 s54, s52, 1')
    k('s_mul_i32 s54, s54, 20480')
    k('s_and_b32 s55, s52, 1')
    k('s_lshl_b32 s55, s55, 7')
    k('s_add_u32 s54, s54, s55')
    for j in range(10):
        a, b = X[2*j], X[2*j+1]
        k(f'v_sub_f32 v132, v{a}, v130')
        k(f'v_sub_f32 v133, v{b}, v130')
        k('v_cvt_pk_bf16_f32 v134, v132, v133')
        k('v_lshlrev_b32 v132, 16, v134'); k('v_and_b32 v133, 0xffff0000, v134')
        k('v_mul_f32 v132, v132, v131'); k('v_mul_f32 v133, v133, v131')
        k(f'v_cvt_pk_bf16_f32 v{140+j}, v132, v133')
        if j & 1:
            k(f'buffer_store_dwordx2 v[{139+j}:{140+j}], v8, s[32:35], s54 offen sc1')
            k('s_add_u32 s54, s54, 4096')

def gen_g1(tag):
    k = K(); k.tag = tag
    name = f'g1{tag}_kernel'
    k('s_cmp_ge_u32 s2, 256')
    k(f's_cbranch_scc1 G1_done{tag}')
    k('s_load_dwordx2 s[4:5], s[0:1], 0')
    k('s_load_dwordx2 s[16:17], s[0:1], 88')
    k('s_and_b32 s10, s2, 7')
    k('s_lshr_b32 s11, s2, 3')
    k('s_lshr_b32 s12, s10, 1')
    k('s_lshl_b32 s12, s12, 2')
    k('s_lshr_b32 s13, s11, 3')
    k('s_add_u32 s48, s12, s13')
    k('s_and_b32 s12, s10, 1')
    k('s_lshl_b32 s12, s12, 3')
    k('s_and_b32 s13, s11, 7')
    k('s_add_u32 s49, s12, s13')
    k('v_lshrrev_b32 v10, 6, v0')
    k('v_readfirstlane_b32 s50, v10')
    k('s_waitcnt lgkmcnt(0)')
    if tag == 'a': srd(k, 20, 4, 5, 0, SZ_ACT)
    else:          srd(k, 20, 16, 17, X2, SZ_ACT)
    srd(k, 24, 16, 17, YB, SZ_ACT)
    srd(k, 28, 16, 17, X1 if tag == 'a' else X3, SZ_ACT)
    srd(k, 32, 16, 17, XNF1 if tag == 'a' else XNF2, SZ_ACT)
    srd(k, 36, 16, 17, W1F, SZ_W1F)
    srd(k, 40, 16, 17, HF, SZ_HF)
    srd(k, 44, 16, 17, FLAGS + (0 if tag == 'a' else 2048), 2048)
    k('v_lshrrev_b32 v10, 5, v0')
    k('v_and_b32 v11, 31, v0')
    k('v_mul_u32_u24 v1, 1280, v10')
    k('v_lshl_add_u32 v1, v11, 3, v1')
    k('v_lshlrev_b32 v2, 4, v0')
    k('v_add_u32 v3, 4096, v2')
    k('v_add_u32 v4, 8192, v2')
    k('v_and_b32 v5, 0xfc, v0')
    k('v_add_u32 v6, v2, v5')
    k(f'v_add_u32 v6, {YS}, v6')
    k('v_mul_u32_u24 v7, 68, v11')
    k('v_lshl_add_u32 v7, v10, 1, v7')
    k(f'v_add_u32 v7, {YS}, v7')
    k('v_lshrrev_b32 v12, 3, v11')
    k('v_lshlrev_b32 v8, 10, v12')
    k('v_bfe_u32 v12, v11, 1, 2')
    k('v_lshl_add_u32 v8, v12, 8, v8')
    k('v_lshl_add_u32 v8, v10, 4, v8')
    k('v_and_b32 v12, 1, v11')
    k('v_lshl_add_u32 v8, v12, 3, v8')
    k('v_and_b32 v12, 63, v0')
    k('v_lshlrev_b32 v9, 4, v12')
    k('s_lshl_b32 s52, s48, 4')
    k('s_add_u32 s52, s52, s49')
    ln_phase(k, True)
    k('s_waitcnt vmcnt(0)')
    k('s_barrier')
    k('s_cmp_lg_u32 s50, 0')
    k(f's_cbranch_scc1 G1_wait{tag}')
    k('s_lshl_b32 s53, s48, 7')
    k('s_lshl_b32 s54, s49, 2')
    k('s_add_u32 s54, s54, s53')
    k('v_mov_b32 v12, 0')
    k('v_mov_b32 v13, 1')
    k('v_cmp_eq_u32 vcc, 0, v0')
    k('s_and_saveexec_b64 s[56:57], vcc')
    k('buffer_store_dword v13, v12, s[44:47], s54 offen sc1')
    k('s_mov_b64 exec, s[56:57]')
    k('v_and_b32 v12, 15, v0')
    k('v_lshlrev_b32 v12, 2, v12')
    k('s_mov_b32 s58, 0')
    k(f'G1_poll{tag}:')
    k('buffer_load_dword v13, v12, s[44:47], s53 offen sc1')
    k('s_waitcnt vmcnt(0)')
    k('v_cmp_ne_u32 vcc, 1, v13')
    k('s_nop 1')
    k('s_cmp_eq_u64 vcc, 0')
    k(f's_cbranch_scc1 G1_pollok{tag}')
    k('s_sleep 2')
    k('s_add_u32 s58, s58, 1')
    k(f's_cmp_lt_u32 s58, {SPIN_MAX}')
    k(f's_cbranch_scc1 G1_poll{tag}')
    k('v_mov_b32 v13, 1')
    k(f's_branch G1_pub{tag}')
    k(f'G1_pollok{tag}:')
    k('v_mov_b32 v13, 0')
    k(f'G1_pub{tag}:')
    k(f'v_mov_b32 v12, {CTRL}')
    k('ds_write_b32 v12, v13')
    k('s_waitcnt lgkmcnt(0)')
    k(f'G1_wait{tag}:')
    k('s_barrier')
    k(f'v_mov_b32 v12, {CTRL}')
    k('ds_read_b32 v13, v12')
    k('s_waitcnt lgkmcnt(0)')
    k('v_readfirstlane_b32 s58, v13')
    k('s_nop 3')
    k('s_cmp_eq_u32 s58, 0')
    k(f's_cbranch_scc1 G1_main{tag}')
    k('s_lshl_b32 s52, s48, 4')
    k('s_mov_b32 s59, 0')
    k(f'G1_fb{tag}:')
    k.fence()
    ln_phase(k, False)
    k('s_waitcnt vmcnt(0) lgkmcnt(0)')
    k('s_barrier')
    k('s_add_u32 s52, s52, 1')
    k('s_add_u32 s59, s59, 1')
    k('s_cmp_lt_u32 s59, 16')
    k(f's_cbranch_scc1 G1_fb{tag}')
    k(f'G1_main{tag}:')
    k.fence()
    k('s_lshl_b32 s53, s48, 3')
    k('s_lshl_b32 s54, s50, 1')
    k('s_add_u32 s53, s53, s54')
    k('s_mul_i32 s60, s53, 20480')
    k('s_add_u32 s61, s60, 20480')
    AR = lambda ks, rt: 64 + 4 * (2 * ks + rt)
    for ks in range(20):
        for rt in range(2):
            r = AR(ks, rt)
            k(f'buffer_load_dwordx4 v[{r}:{r+3}], v9, s[32:35], s{60+rt} offen offset:{1024*(ks%4)} sc1')
        if ks % 4 == 3:
            k('s_add_u32 s60, s60, 4096'); k('s_add_u32 s61, s61, 4096')
    k('s_mul_i32 s62, s53, 55296')
    k('s_add_u32 s63, s62, 55296')
    k('s_mul_i32 s64, s49, 7')
    k('v_add_u32 v10, 57344, v9')
    k('v_add_u32 v11, 114688, v9')
    PF = 5
    NB = 6
    BR = lambda n: 40 + 4 * (n % NB)
    def bread(n):
        ct, ks = divmod(n, 20)
        idx = ks * 7 + ct
        seg, off = divmod(idx, 56)
        r = BR(n)
        k(f'ds_read_b128 v[{r}:{r+3}], v{(9,10,11)[seg]} offset:{off*1024}')
    def epi_ops(ct):
        ops = []
        p = ct & 1
        ops.append(f's_add_u32 s65, s64, {ct}')
        ops.append('s_lshr_b32 s66, s65, 1')
        ops.append('s_lshl_b32 s66, s66, 10')
        ops.append('s_and_b32 s65, s65, 1')
        ops.append('s_lshl_b32 s65, s65, 3')
        ops.append('s_add_u32 s65, s65, s66')
        for rt in range(2):
            a = 224 + 8 * p + 4 * rt
            t = 24 + 8 * rt
            o = 240 + 4 * p + 2 * rt
            ops.append(f'v_cvt_pk_bf16_f32 v{t+4}, v{a}, v{a+1}')
            ops.append(f'v_cvt_pk_bf16_f32 v{t+5}, v{a+2}, v{a+3}')
            ops.append(f'v_lshlrev_b32 v{t}, 16, v{t+4}')
            ops.append(f'v_and_b32 v{t+1}, 0xffff0000, v{t+4}')
            ops.append(f'v_lshlrev_b32 v{t+2}, 16, v{t+5}')
            ops.append(f'v_and_b32 v{t+3}, 0xffff0000, v{t+5}')
            for e in range(4): ops.append(f'v_mul_f32 v{t+4+e}, 0xbfb8aa3b, v{t+e}')
            for e in range(4): ops.append(f'v_exp_f32 v{t+4+e}, v{t+4+e}')
            for e in range(4): ops.append(f'v_add_f32 v{t+4+e}, 1.0, v{t+4+e}')
            for e in range(4): ops.append(f'v_rcp_f32 v{t+4+e}, v{t+4+e}')
            for e in range(4): ops.append(f'v_mul_f32 v{t+e}, v{t+e}, v{t+4+e}')
            ops.append(f'v_cvt_pk_bf16_f32 v{o}, v{t}, v{t+1}')
            ops.append(f'v_cvt_pk_bf16_f32 v{o+1}, v{t+2}, v{t+3}')
            ops.append(f's_add_u32 s67, s{62+rt}, s65')
            ops.append(f'buffer_store_dwordx2 v[{o}:{o+1}], v9, s[40:43], s67 offen')
        return ops
    for n in range(PF): bread(n)
    pending = []
    nstores = 0
    for ct in range(7):
        p = ct & 1
        for ks in range(20):
            n = ct * 20 + ks
            if n + PF < 140: bread(n + PF)
            rem = min(PF, 139 - n)
            if ct == 0:
                k(f's_waitcnt vmcnt({40 - 2*(ks+1)}) lgkmcnt({rem})')
            else:
                k(f's_waitcnt lgkmcnt({rem})')
            b = BR(n)
            for rt in range(2):
                a = 224 + 8 * p + 4 * rt
                x = AR(ks, rt)
                c = '0' if ks == 0 else f'v[{a}:{a+3}]'
                k(f'v_mfma_f32_16x16x32_bf16 v[{a}:{a+3}], v[{b}:{b+3}], v[{x}:{x+3}], {c}')
                if ks >= 2:
                    for _ in range(2):
                        if pending: k(pending.pop(0))
        while pending: k(pending.pop(0))
        if ct == 2:
            k('s_cmp_eq_u32 s49, 15')
            k(f's_cbranch_scc1 G1_tail2{tag}')
        pending = epi_ops(ct)
    for o in pending: k(o)
    k('s_endpgm')
    k(f'G1_tail2{tag}:')
    k.fence()
    for o in epi_ops(2): k(o)
    k(f'G1_done{tag}:')
    k('s_endpgm')
    return header(name) + k.render(), desc(name, 256)

def gen_g2(tag):
    k = K(); k.tag = tag
    name = f'g2{tag}_kernel'
    k('s_cmp_ge_u32 s2, 256')
    k(f's_cbranch_scc1 G2_done{tag}')
    k('s_load_dwordx2 s[4:5], s[0:1], 72')
    k('s_load_dwordx2 s[16:17], s[0:1], 88')
    k('s_and_b32 s10, s2, 7')
    k('s_lshr_b32 s11, s2, 3')
    k('s_lshr_b32 s12, s10, 1')
    k('s_lshl_b32 s12, s12, 3')
    k('s_lshr_b32 s13, s11, 2')
    k('s_add_u32 s48, s12, s13')
    k('s_and_b32 s12, s10, 1')
    k('s_lshl_b32 s12, s12, 2')
    k('s_and_b32 s13, s11, 3')
    k('s_add_u32 s49, s12, s13')
    k('v_lshrrev_b32 v10, 6, v0')
    k('v_readfirstlane_b32 s50, v10')
    k('s_waitcnt lgkmcnt(0)')
    srd(k, 20, 16, 17, HF, SZ_HF)
    srd(k, 24, 16, 17, W2F, SZ_W2F)
    srd(k, 28, 16, 17, X1 if tag == 'a' else X3, SZ_ACT)
    if tag == 'a': srd(k, 32, 16, 17, X2, SZ_ACT)
    else:          srd(k, 32, 4, 5, 0, SZ_ACT)
    k('v_and_b32 v1, 63, v0')
    k('v_lshlrev_b32 v9, 4, v1')
    k('v_add_u32 v8, 4096, v9')
    k('v_and_b32 v2, 15, v1')
    k('v_mul_u32_u24 v2, 1280, v2')
    k('v_lshrrev_b32 v3, 4, v1')
    k('v_lshl_add_u32 v2, v3, 3, v2')
    k('s_lshl_b32 s51, s48, 2')
    k('s_add_u32 s51, s51, s50')
    k('s_mul_i32 s51, s51, 20480')
    k('s_mul_i32 s52, s49, 160')
    k('s_add_u32 s51, s51, s52')
    for ct in range(5):
        k(f'buffer_load_dwordx2 v[{10+2*ct}:{11+2*ct}], v2, s[28:31], s51 offen offset:{32*ct}')
    k('s_mul_i32 s53, s50, 14')
    k('s_cmp_eq_u32 s50, 3')
    k('s_cselect_b32 s54, 1, 0')
    k('s_sub_u32 s53, s53, s54')
    k('s_lshl_b32 s54, s48, 2')
    k('s_mul_i32 s54, s54, 54')
    k('s_add_u32 s54, s54, s53')
    k('s_lshl_b32 s60, s54, 10')
    for rt in range(1, 4): k(f's_add_u32 s{60+rt}, s{59+rt}, 55296')
    k('s_mul_i32 s54, s49, 54')
    k('s_add_u32 s54, s54, s53')
    k('s_mul_i32 s64, s54, 5120')
    k('s_add_u32 s65, s64, 66560')
    k('s_cmp_ge_u32 s50, 2')
    k('s_cselect_b32 s65, 0x7f000000, s65')
    PD = 4
    NIT = 14
    ST = lambda it: 24 + 36 * (it % PD)
    def loads(it):
        b = ST(it)
        sb = 's65' if it == NIT - 1 else 's64'
        for ct in range(5):
            if ct < 4: k(f'buffer_load_dwordx4 v[{b+16+4*ct}:{b+19+4*ct}], v9, s[24:27], {sb} offen offset:{1024*ct}')
            else:      k(f'buffer_load_dwordx4 v[{b+32}:{b+35}], v8, s[24:27], {sb} offen')
        for rt in range(4):
            k(f'buffer_load_dwordx4 v[{b+4*rt}:{b+4*rt+3}], v9, s[20:23], s{60+rt} offen')
            k(f's_add_u32 s{60+rt}, s{60+rt}, 1024')
        k('s_add_u32 s64, s64, 5120')
    ACC = lambda ct, rt: 168 + 4 * (4 * ct + rt)
    for it in range(PD - 1): loads(it)
    for it in range(NIT):
        if it + PD - 1 < NIT: loads(it + PD - 1)
        rem = min(PD - 1, NIT - 1 - it)
        k(f's_waitcnt vmcnt({9*rem})')
        b = ST(it)
        for ct in range(5):
            for rt in range(4):
                a = ACC(ct, rt)
                c = '0' if it == 0 else f'v[{a}:{a+3}]'
                k(f'v_mfma_f32_16x16x32_bf16 v[{a}:{a+3}], v[{b+16+4*ct}:{b+19+4*ct}], v[{b+4*rt}:{b+4*rt+3}], {c}')
    k('s_mul_i32 s53, s50, 5120')
    k('v_add_u32 v3, s53, v9')
    k('v_add_u32 v4, 40960, v3')
    for rt in range(4):
        for ct in range(5):
            a = ACC(ct, rt)
            k(f'ds_write_b128 v{3 + (rt>>1)}, v[{a}:{a+3}] offset:{(rt&1)*20480 + ct*1024}')
    k('s_waitcnt lgkmcnt(0)')
    k('s_barrier')
    k('s_mul_i32 s53, s50, 20480')
    k('v_add_u32 v3, s53, v9')
    for sw in range(4):
        for ct in range(5):
            r = 24 + 20 * sw + 4 * ct
            k(f'ds_read_b128 v[{r}:{r+3}], v3 offset:{sw*5120 + ct*1024}')
    k('s_waitcnt lgkmcnt(0)')
    for ct in range(5):
        for e in range(4):
            r = 24 + 4 * ct + e
            k(f'v_add_f32 v{r}, v{r}, v{r+20}')
            k(f'v_add_f32 v{r+40}, v{r+40}, v{r+60}')
            k(f'v_add_f32 v{r}, v{r}, v{r+40}')
        r = 24 + 4 * ct
        k(f'v_cvt_pk_bf16_f32 v110, v{r}, v{r+1}')
        k(f'v_cvt_pk_bf16_f32 v111, v{r+2}, v{r+3}')
        k('v_lshlrev_b32 v112, 16, v110'); k('v_and_b32 v113, 0xffff0000, v110')
        k('v_lshlrev_b32 v114, 16, v111'); k('v_and_b32 v115, 0xffff0000, v111')
        k(f'v_lshlrev_b32 v116, 16, v{10+2*ct}'); k(f'v_and_b32 v117, 0xffff0000, v{10+2*ct}')
        k(f'v_lshlrev_b32 v118, 16, v{11+2*ct}'); k(f'v_and_b32 v119, 0xffff0000, v{11+2*ct}')
        for e in range(4): k(f'v_add_f32 v{112+e}, v{112+e}, v{116+e}')
        k(f'v_cvt_pk_bf16_f32 v{120+2*ct}, v112, v113')
        k(f'v_cvt_pk_bf16_f32 v{121+2*ct}, v114, v115')
        k(f'buffer_store_dwordx2 v[{120+2*ct}:{121+2*ct}], v2, s[32:35], s51 offen offset:{32*ct}')
    k(f'G2_done{tag}:')
    k('s_endpgm')
    return header(name) + k.render(), desc(name, 256)
```

```python
import sys
from asmlib import K

S, D, F = 2048, 640, 1728
KVR   = 0x0000000
W1F   = 0x0280000
W2F   = 0x04C0000
YB    = 0x0700000
XNF1  = 0x0980000
XNF2  = 0x0C00000
X1    = 0x0E80000
X2    = 0x1100000
X3    = 0x1380000
HF    = 0x1600000
FLAGS = 0x1D00000
SZ_ACT = S * D * 2
SZ_W1F = 16 * 143360
SZ_W2F = 8 * 276480
SZ_HF = S * F * 2

NP_KV, NP_W1, NP_W2 = 320, 280, 270
NP = NP_KV + NP_W1 + NP_W2 + 1

def srd(k, s, base_lo, base_hi, off, size):
    if off:
        k(f's_add_u32 s{s}, s{base_lo}, {off}')
        k(f's_addc_u32 s{s+1}, s{base_hi}, 0')
    else:
        k(f's_mov_b32 s{s}, s{base_lo}')
        k(f's_mov_b32 s{s+1}, s{base_hi}')
    k(f's_and_b32 s{s+1}, s{s+1}, 0xffff')
    k(f's_mov_b32 s{s+2}, {size}')
    k(f's_mov_b32 s{s+3}, 0x00020000')

def header(name):
    return f'.globl {name}\n.p2align 8\n.type {name},@function\n{name}:\n'

def desc(name, vgpr, sgpr=96, accum=None):
    if accum is None: accum = (vgpr + 3) // 4 * 4
    return (f'.amdhsa_kernel {name}\n  .amdhsa_next_free_vgpr {vgpr}\n  .amdhsa_next_free_sgpr {sgpr}\n'
            f'  .amdhsa_accum_offset {accum}\n  .amdhsa_group_segment_fixed_size 0\n  .amdhsa_kernarg_size 96\n'
            f'  .amdhsa_user_sgpr_count 2\n  .amdhsa_user_sgpr_kernarg_segment_ptr 1\n'
            f'  .amdhsa_system_sgpr_workgroup_id_x 1\n.end_amdhsa_kernel\n')

def gen_p():
    k = K()
    k('s_load_dwordx4 s[4:7], s[0:1], 8')
    k('s_load_dwordx2 s[8:9], s[0:1], 24')
    k('s_load_dwordx4 s[12:15], s[0:1], 56')
    k('s_load_dwordx2 s[16:17], s[0:1], 88')
    k(f's_cmp_ge_u32 s2, {NP}')
    k('s_cbranch_scc1 P_done')
    k('s_waitcnt lgkmcnt(0)')
    k(f's_cmp_ge_u32 s2, {NP_KV}')
    k('s_cbranch_scc1 P_not_kv')
    srd(k, 20, 4, 5, 0, SZ_ACT)
    srd(k, 24, 6, 7, 0, SZ_ACT)
    srd(k, 28, 8, 9, 0, D * 8)
    srd(k, 32, 16, 17, KVR, SZ_ACT)
    k('s_mul_i32 s36, s2, 205')
    k('s_lshr_b32 s36, s36, 11')
    k('s_mul_i32 s37, s36, 10')
    k('s_sub_u32 s37, s2, s37')
    k('v_and_b32 v1, 31, v0')
    k('v_lshrrev_b32 v2, 5, v0')
    k('s_lshl_b32 s38, s37, 6')
    k('v_lshl_add_u32 v3, v1, 1, s38')
    k('s_lshl_b32 s39, s36, 6')
    k('v_lshl_add_u32 v4, v2, 3, s39')
    k('s_movk_i32 s40, 1280')
    k('v_mul_lo_u32 v5, v4, s40')
    k('v_lshl_add_u32 v5, v3, 1, v5')
    k('v_subrev_u32 v6, 3840, v5')
    for i in range(3):
        k(f'buffer_load_dword v{10+i}, v6, s[20:23], 0 offen offset:{1280*i}')
    for i in range(3, 7):
        k(f'buffer_load_dword v{10+i}, v5, s[20:23], 0 offen offset:{1280*(i-3)}')
    k('v_add_u32 v7, 5120, v5')
    for i in range(7, 11):
        k(f'buffer_load_dword v{10+i}, v7, s[20:23], 0 offen offset:{1280*(i-7)}')
    for i in range(4):
        k(f'buffer_load_dword v{22+i}, v5, s[24:27], 0 offen offset:{1280*i}')
    for i in range(4, 8):
        k(f'buffer_load_dword v{22+i}, v7, s[24:27], 0 offen offset:{1280*(i-4)}')
    k('v_lshlrev_b32 v8, 3, v3')
    k('buffer_load_dwordx4 v[32:35], v8, s[28:31], 0 offen')
    k('s_waitcnt vmcnt(0)')
    for c in range(2):
        for j in range(4):
            src = 32 + c * 2 + (j >> 1)
            if j & 1: k(f'v_and_b32 v{36+4*c+j}, 0xffff0000, v{src}')
            else:     k(f'v_lshlrev_b32 v{36+4*c+j}, 16, v{src}')
    for i in range(11):
        k(f'v_lshlrev_b32 v{44+i}, 16, v{10+i}')
        k(f'v_and_b32 v{55+i}, 0xffff0000, v{10+i}')
    for r in range(8):
        for t in range(4):
            k(f'v_mul_f32 v66, v{44+r+t}, v{36+3-t}')
            k(f'v_mul_f32 v67, v{55+r+t}, v{40+3-t}')
            k('v_cvt_pk_bf16_f32 v68, v66, v67')
            if t == 0:
                k('v_lshlrev_b32 v86, 16, v68')
                k('v_and_b32 v87, 0xffff0000, v68')
            else:
                k('v_lshlrev_b32 v66, 16, v68')
                k('v_and_b32 v67, 0xffff0000, v68')
                k('v_add_f32 v66, v86, v66')
                k('v_add_f32 v67, v87, v67')
                k('v_cvt_pk_bf16_f32 v68, v66, v67')
                k('v_lshlrev_b32 v86, 16, v68')
                k('v_and_b32 v87, 0xffff0000, v68')
        k(f'v_lshlrev_b32 v66, 16, v{22+r}')
        k(f'v_and_b32 v67, 0xffff0000, v{22+r}')
        k(f'v_mul_f32 v{70+r}, v86, v66')
        k(f'v_mul_f32 v{78+r}, v87, v67')
    for c in range(2):
        for j in range(4):
            b = 70 + 8 * c
            k(f'v_cvt_pk_bf16_f32 v{88+4*c+j}, v{b+7-2*j}, v{b+6-2*j}')
    k('v_lshlrev_b32 v9, 12, v3')
    k('v_sub_u32 v8, 2040, v4')
    k('v_lshl_add_u32 v9, v8, 1, v9')
    k('v_add_u32 v8, 4096, v9')
    k('buffer_store_dwordx4 v[88:91], v9, s[32:35], 0 offen')
    k('buffer_store_dwordx4 v[92:95], v8, s[32:35], 0 offen')
    k('s_endpgm')
    k('P_not_kv:')
    k.fence()
    k(f's_cmp_ge_u32 s2, {NP_KV + NP_W1}')
    k('s_cbranch_scc1 P_not_w1')
    srd(k, 20, 12, 13, 0, D * F * 2)
    srd(k, 24, 16, 17, W1F, SZ_W1F)
    k(f's_sub_u32 s36, s2, {NP_KV}')
    k('s_mul_i32 s37, s36, 293')
    k('s_lshr_b32 s37, s37, 11')
    k('s_mul_i32 s38, s37, 7')
    k('s_sub_u32 s38, s36, s38')
    k('v_and_b32 v1, 127, v0')
    k('s_lshl_b32 s39, s38, 7')
    k('v_add_u32 v1, s39, v1')
    k('v_lshrrev_b32 v2, 7, v0')
    k('s_lshl_b32 s39, s37, 1')
    k('v_add_u32 v2, s39, v2')
    k('v_lshlrev_b32 v3, 1, v1')
    k('s_movk_i32 s40, 27648')
    k('v_mul_lo_u32 v4, v2, s40')
    k('v_lshl_add_u32 v4, v3, 1, v4')
    k('v_mov_b32 v5, 0x7ff00000')
    k(f'v_cmp_gt_u32 vcc, {F}, v3')
    k('v_cndmask_b32 v4, v5, v4, vcc')
    for e in range(8):
        if e == 0: k('buffer_load_dword v10, v4, s[20:23], 0 offen')
        else:
            k(f'v_add_u32 v{20+e}, {3456*e}, v4')
            k(f'buffer_load_dword v{10+e}, v{20+e}, s[20:23], 0 offen')
    k('v_lshrrev_b32 v5, 4, v3')
    k('v_mul_u32_u24 v6, 147, v5')
    k('v_lshrrev_b32 v6, 10, v6')
    k('v_mul_u32_u24 v7, 7, v6')
    k('v_sub_u32 v7, v5, v7')
    k('v_lshrrev_b32 v8, 2, v2')
    k('v_and_b32 v9, 3, v2')
    k('v_mul_u32_u24 v6, 20, v6')
    k('v_add_u32 v6, v6, v8')
    k('v_mul_u32_u24 v6, 7, v6')
    k('v_add_u32 v6, v6, v7')
    k('v_lshlrev_b32 v6, 6, v6')
    k('v_lshl_add_u32 v6, v9, 4, v6')
    k('v_and_b32 v7, 15, v3')
    k('v_add_u32 v6, v6, v7')
    k('v_lshlrev_b32 v6, 4, v6')
    k('s_mov_b32 s40, 0x05040100')
    k('s_mov_b32 s41, 0x07060302')
    k('s_waitcnt vmcnt(0)')
    for j in range(4):
        k(f'v_perm_b32 v{32+j}, v{11+2*j}, v{10+2*j}, s40')
        k(f'v_perm_b32 v{36+j}, v{11+2*j}, v{10+2*j}, s41')
    k('buffer_store_dwordx4 v[32:35], v6, s[24:27], 0 offen')
    k('buffer_store_dwordx4 v[36:39], v6, s[24:27], 0 offen offset:16')
    k('s_endpgm')
    k('P_not_w1:')
    k.fence()
    k(f's_cmp_ge_u32 s2, {NP_KV + NP_W1 + NP_W2}')
    k('s_cbranch_scc1 P_flags')
    srd(k, 20, 14, 15, 0, D * F * 2)
    srd(k, 24, 16, 17, W2F, SZ_W2F)
    k(f's_sub_u32 s36, s2, {NP_KV + NP_W1}')
    k('s_mul_i32 s37, s36, 205')
    k('s_lshr_b32 s37, s37, 10')
    k('s_mul_i32 s38, s37, 5')
    k('s_sub_u32 s38, s36, s38')
    k('v_and_b32 v1, 63, v0')
    k('s_lshl_b32 s39, s38, 6')
    k('v_add_u32 v1, s39, v1')
    k('v_lshlrev_b32 v3, 1, v1')
    k('v_lshrrev_b32 v9, 6, v0')
    k('s_lshl_b32 s39, s37, 5')
    k('v_lshl_add_u32 v2, v9, 2, s39')
    k('s_movk_i32 s40, 1280')
    k('v_mul_lo_u32 v4, v2, s40')
    k('v_lshl_add_u32 v4, v3, 1, v4')
    k('v_add_u32 v5, 20480, v4')
    for e in range(8):
        vb = 4 if e < 4 else 5
        k(f'buffer_load_dword v{10+e}, v{vb}, s[20:23], 0 offen offset:{1280*(e&3)}')
    k('v_lshrrev_b32 v5, 4, v3')
    k('v_mul_u32_u24 v6, 205, v5')
    k('v_lshrrev_b32 v6, 10, v6')
    k('v_mul_u32_u24 v7, 5, v6')
    k('v_sub_u32 v7, v5, v7')
    k('v_mul_u32_u24 v6, 54, v6')
    k('v_add_u32 v6, s37, v6')
    k('v_mul_u32_u24 v6, 5, v6')
    k('v_add_u32 v6, v6, v7')
    k('v_lshlrev_b32 v6, 6, v6')
    k('v_lshl_add_u32 v6, v9, 4, v6')
    k('v_and_b32 v7, 15, v3')
    k('v_add_u32 v6, v6, v7')
    k('v_lshlrev_b32 v6, 4, v6')
    k('s_mov_b32 s40, 0x05040100')
    k('s_mov_b32 s41, 0x07060302')
    k('s_waitcnt vmcnt(0)')
    for j in range(4):
        k(f'v_perm_b32 v{32+j}, v{11+2*j}, v{10+2*j}, s40')
        k(f'v_perm_b32 v{36+j}, v{11+2*j}, v{10+2*j}, s41')
    k('buffer_store_dwordx4 v[32:35], v6, s[24:27], 0 offen')
    k('buffer_store_dwordx4 v[36:39], v6, s[24:27], 0 offen offset:16')
    k('s_endpgm')
    k('P_flags:')
    k.fence()
    srd(k, 24, 16, 17, FLAGS, 4096)
    k('v_lshlrev_b32 v1, 4, v0')
    k('v_mov_b32 v4, 0')
    k('v_mov_b32 v5, 0')
    k('v_mov_b32 v6, 0')
    k('v_mov_b32 v7, 0')
    k('buffer_store_dwordx4 v[4:7], v1, s[24:27], 0 offen')
    k('P_done:')
    k('s_endpgm')
    return header('p_kernel') + k.render(), desc('p_kernel', 96)

assert all((w * 205) >> 11 == w // 10 for w in range(320))
assert all((j * 293) >> 11 == j // 7 for j in range(280))
assert all((j * 147) >> 10 == j // 7 for j in range(112))
assert all((j * 205) >> 10 == j // 5 for j in range(40))
assert all((j * 205) >> 10 == j // 5 for j in range(270))

def main(out):
    kernels = [gen_p()]
    launches = [f'; @launch kernel=p_kernel grid=({NP},1,1) block=(256,1,1) lds=0']
    try:
        from gen_c import gen_c, C_LDS
        kernels.append(gen_c())
        launches.append(f'; @launch kernel=c_kernel grid=(640,1,1) block=(64,1,1) lds={C_LDS}')
        from gen_g import gen_g1, gen_g2, G1_LDS, G2_LDS
        kernels.append(gen_g1('a')); kernels.append(gen_g2('a')); kernels.append(gen_g1('b')); kernels.append(gen_g2('b'))
        launches.append(f'; @launch kernel=g1a_kernel grid=(256,1,1) block=(256,1,1) lds={G1_LDS}')
        launches.append(f'; @launch kernel=g2a_kernel grid=(256,1,1) block=(256,1,1) lds={G2_LDS}')
        launches.append(f'; @launch kernel=g1b_kernel grid=(256,1,1) block=(256,1,1) lds={G1_LDS}')
        launches.append(f'; @launch kernel=g2b_kernel grid=(256,1,1) block=(256,1,1) lds={G2_LDS}')
    except ImportError as e:
        print('partial build:', e, file=sys.stderr)
    txt = '; generated by gen/gen.py (hand-written generator)\n' + '\n'.join(launches) + '\n'
    txt += '.amdgcn_target "amdgcn-amd-amdhsa--gfx950"\n.text\n'
    for body, _ in kernels: txt += body
    txt += '.section .rodata,"a"\n'
    for _, d in kernels: txt += '.p2align 6\n' + d
    open(out, 'w').write(txt)

if __name__ == '__main__':
    main(sys.argv[1] if len(sys.argv) > 1 else 'interleave_layers__ssm_conv_h3__dense_activation_silu__prompt.s')
```
